```python
import torch

def _softmax(x, axis=-1):
    return torch.softmax(x, dim=axis)
def _gelu(x):
    return torch.nn.functional.gelu(x, approximate="tanh")
def _silu(x):
    return torch.nn.functional.silu(x)
def _sigmoid(x):
    return torch.sigmoid(x)
def _layernorm(x, axis=-1, eps=1e-5):
    m = x.mean(dim=axis, keepdim=True)
    v = x.var(dim=axis, keepdim=True, unbiased=False)
    return (x - m) / torch.sqrt(v + eps)
def _scatter_add(tgt, idx, src, axis=0):
    return tgt.clone().index_add_(axis, idx, src)
def _segment_sum(src, seg, n):
    out = torch.zeros((n,) + src.shape[1:], dtype=src.dtype)
    return out.index_add_(0, seg, src)
def _pad(x, pw):
    flat = tuple(v for pair in reversed(pw) for v in pair)
    return torch.nn.functional.pad(x, flat)

kernel_name = 'concat_heads__mha_block_cached__mha_block_cached__near_ridge'

def setup_inputs():

    _w = (lambda a: (lambda t: t.to(torch.bfloat16) if t.is_floating_point() else t)(torch.as_tensor(a)))
    def _A_setup():
        B, Sq, D = 8, 304, 448
        H, Sk, Dh = 16, 1024, 256
        return {
            "x": _w((lambda *s: torch.randn(*s, dtype=torch.bfloat16) * 0.8)(B, Sq, D)),
            "k_cache": _w((lambda *s: torch.randn(*s, dtype=torch.bfloat16) * 0.8)(B, H, Sk, Dh)),
            "v_cache": _w((lambda *s: torch.randn(*s, dtype=torch.bfloat16) * 0.05)(B, H, Sk, Dh)),
            "wq": _w((lambda *s: torch.randn(*s, dtype=torch.bfloat16) * 0.8)(D, H * Dh) * (D ** -0.5)),
            "wo": _w((lambda *s: torch.randn(*s, dtype=torch.bfloat16) * 0.05)(H * Dh, D) * ((H * Dh) ** -0.5)),
        }
    _A_in = _A_setup()

    def _B_setup():
        B, Sq, D = 8, 304, 448
        H, Sk, Dh = 16, 1024, 256
        return {
            "x": _w((lambda *s: torch.randn(*s, dtype=torch.bfloat16) * 0.8)(B, Sq, D)),
            "k_cache": _w((lambda *s: torch.randn(*s, dtype=torch.bfloat16) * 0.8)(B, H, Sk, Dh)),
            "v_cache": _w((lambda *s: torch.randn(*s, dtype=torch.bfloat16) * 0.05)(B, H, Sk, Dh)),
            "wq": _w((lambda *s: torch.randn(*s, dtype=torch.bfloat16) * 0.8)(D, H * Dh) * (D ** -0.5)),
            "wo": _w((lambda *s: torch.randn(*s, dtype=torch.bfloat16) * 0.05)(H * Dh, D) * ((H * Dh) ** -0.5)),
        }
    _B_in = _B_setup()

    return {
        "A_x": _A_in["x"],
        "A_k_cache": _A_in["k_cache"],
        "A_v_cache": _A_in["v_cache"],
        "A_wq": _A_in["wq"],
        "A_wo": _A_in["wo"],
        "B_x": _B_in["x"],
        "B_k_cache": _B_in["k_cache"],
        "B_v_cache": _B_in["v_cache"],
        "B_wq": _B_in["wq"],
        "B_wo": _B_in["wo"],
    }

def reference(A_x, A_k_cache, A_v_cache, A_wq, A_wo, B_x, B_k_cache, B_v_cache, B_wq, B_wo):
    def _A_ref(x, k_cache, v_cache, wq, wo):
        B, Sq, D = x.shape
        H, Dh = 16, 256
        q = (lambda x, *d: x.permute(*d))((x @ wq).reshape(B, Sq, H, Dh), 0, 2, 1, 3)
        scores = torch.einsum("bhqd,bhkd->bhqk", q, k_cache) * (Dh ** -0.5)
        p = _softmax(scores, axis=-1)
        o = torch.einsum("bhqk,bhkd->bhqd", p, v_cache)
        return (lambda x, *d: x.permute(*d))(o, 0, 2, 1, 3).reshape(B, Sq, H * Dh) @ wo

    def _B_ref(x, k_cache, v_cache, wq, wo):
        B, Sq, D = x.shape
        H, Dh = 16, 256
        q = (lambda x, *d: x.permute(*d))((x @ wq).reshape(B, Sq, H, Dh), 0, 2, 1, 3)
        scores = torch.einsum("bhqd,bhkd->bhqk", q, k_cache) * (Dh ** -0.5)
        p = _softmax(scores, axis=-1)
        o = torch.einsum("bhqk,bhkd->bhqd", p, v_cache)
        return (lambda x, *d: x.permute(*d))(o, 0, 2, 1, 3).reshape(B, Sq, H * Dh) @ wo

    a = _A_ref(A_x, A_k_cache, A_v_cache, A_wq, A_wo)
    b = _B_ref(B_x, B_k_cache, B_v_cache, B_wq, B_wo)
    return torch.concatenate([a, b], axis=-1)
```

```python
NAME = "concat_heads__mha_block_cached__mha_block_cached__near_ridge"

class Asm:
    def __init__(self):
        self.lines = []
    def __call__(self, s=""):
        for l in s.split("\n"):
            l = l.strip()
            if l:
                self.lines.append(l if l.endswith(":") else "    " + l)
    def label(self, s):
        self.lines.append(s + ":")
    def text(self):
        return "\n".join(self.lines) + "\n"

def vr(base, n=1, f="v"):
    return f"{f}{base}" if n == 1 else f"{f}[{base}:{base + n - 1}]"

def reg(r, n=1):
    if r < 256:
        assert r + n <= 256, (r, n)
        return vr(r, n, "v")
    return vr(r - 256, n, "a")

def kernel_header(name):
    return f""".globl {name}
.p2align 8
.type {name},@function
{name}:
"""

def kernel_desc(name, vgpr=512, sgpr=102, accum=256):
    return f""".amdhsa_kernel {name}
  .amdhsa_next_free_vgpr {vgpr}
  .amdhsa_next_free_sgpr {sgpr}
  .amdhsa_accum_offset {accum}
  .amdhsa_group_segment_fixed_size 0
  .amdhsa_kernarg_size 104
  .amdhsa_user_sgpr_count 2
  .amdhsa_user_sgpr_kernarg_segment_ptr 1
  .amdhsa_system_sgpr_workgroup_id_x 1
.end_amdhsa_kernel
"""
```

```python
import re

def R(f, base, n=1):
    return f"{f}{base}" if n == 1 else f"{f}[{base}:{base + n - 1}]"

def ureg(r, n=1):
    if r < 256:
        assert r + n <= 256, (r, n)
        return R("v", r, n)
    assert r + n <= 512
    return R("a", r - 256, n)

_REG = re.compile(r"^(-|\|)?([vas])(\d+)\|?$")
_RNG = re.compile(r"^(-|\|)?([vas])\[(\d+):(\d+)\]\|?$")

def regs_of(tok):
    tok = tok.strip()
    m = _REG.match(tok)
    if m: return [m.group(2) + m.group(3)]
    m = _RNG.match(tok)
    if m: return [m.group(2) + str(i) for i in range(int(m.group(3)), int(m.group(4)) + 1)]
    if tok in ("vcc", "m0", "exec", "scc"): return [tok]
    if tok in ("vcc_lo", "vcc_hi"): return ["vcc"]
    if tok in ("exec_lo", "exec_hi"): return ["exec"]
    return []

TRANS = ("v_exp_f32", "v_log_f32", "v_rcp_f32", "v_rsq_f32", "v_sqrt_f32")

class Ins:
    def __init__(self, text, tag=None, need=None):
        self.text = text.strip()
        self.tag = tag
        self.need = need
        self.parse()

    def parse(self):
        t = self.text.split(";")[0].strip()
        self.label = t.endswith(":")
        self.rd, self.wr = set(), set()
        self.kind = "other"
        self.mn = ""
        if self.label or not t:
            self.kind = "label"; return
        parts = t.split(None, 1)
        mn = parts[0]; self.mn = mn
        ops = []
        if len(parts) > 1:
            ops = [o.strip() for o in parts[1].split(",")]
            last = ops[-1].split()
            if last:
                ops[-1] = last[0]
                self.mods = last[1:]
            else:
                self.mods = []
        else:
            self.mods = []
        rg = [regs_of(o) for o in ops]
        self.ops = ops
        base = re.sub(r"_e(32|64)$", "", mn)
        if mn == "WAITVM":
            self.kind = "waitvm"
        elif mn.startswith("v_mfma"):
            self.kind = "mfma"
            self.wr = set(rg[0]); self.srcA = set(rg[1]); self.srcB = set(rg[2]); self.srcC = set(rg[3])
            self.dst = rg[0]
            self.rd = self.srcA | self.srcB | self.srcC
        elif mn.startswith("ds_read") or mn.startswith("ds_bpermute") or mn.startswith("ds_swizzle"):
            self.kind = "dsr"
            self.wr = set(rg[0]); self.rd = set(sum(rg[1:], []))
        elif mn.startswith("ds_write"):
            self.kind = "dsw"
            self.rd = set(sum(rg, []))
        elif mn.startswith("buffer_load"):
            if "lds" in self.mods:
                self.kind = "dma"
                self.rd = set(sum(rg, [])) | {"m0"}
            else:
                self.kind = "vml"
                self.wr = set(rg[0]); self.rd = set(sum(rg[1:], []))
        elif mn.startswith("buffer_store") or mn.startswith("global_store"):
            self.kind = "vms"
            self.rd = set(sum(rg, []))
            self.data = set(rg[0]) if mn.startswith("buffer_store") else set(rg[1])
        elif mn.startswith("buffer_wbl2") or mn.startswith("buffer_inv"):
            self.kind = "vms"; self.data = set()
        elif mn.startswith("buffer_atomic") or mn.startswith("global_atomic"):
            self.kind = "vms"; self.rd = set(sum(rg, [])); self.data = set()
        elif mn.startswith("global_load"):
            self.kind = "vml"
            self.wr = set(rg[0]); self.rd = set(sum(rg[1:], []))
        elif mn.startswith("v_"):
            self.kind = "trans" if base in TRANS else "valu"
            if base.startswith("v_cmp"):
                self.wr = set(rg[0]); self.rd = set(sum(rg[1:], []))
            elif base.startswith("v_permlane") and "swap" in base:
                self.wr = set(rg[0]) | set(rg[1]); self.rd = set(self.wr)
            elif base in ("v_readfirstlane_b32", "v_readlane_b32"):
                self.wr = set(rg[0]); self.rd = set(sum(rg[1:], []))
            elif base in ("v_fmac_f32", "v_dot2c_f32_bf16"):
                self.wr = set(rg[0]); self.rd = set(sum(rg, []))
            elif base.startswith("v_cndmask") and len(rg) == 3:
                self.wr = set(rg[0]); self.rd = set(sum(rg[1:], [])) | {"vcc"}
            elif base in ("v_add_co_u32", "v_addc_co_u32"):
                self.wr = set(rg[0]) | set(rg[1]); self.rd = set(sum(rg[2:], []))
            else:
                self.wr = set(rg[0]); self.rd = set(sum(rg[1:], []))
        elif mn == "s_waitcnt":
            self.kind = "wait"
            m = re.search(r"vmcnt\((\d+)\)", t); self.vm = int(m.group(1)) if m else None
            m = re.search(r"lgkmcnt\((\d+)\)", t); self.lg = int(m.group(1)) if m else None
        elif mn == "s_nop":
            self.kind = "nop"; self.n = int(ops[0]) + 1
        elif mn == "s_barrier":
            self.kind = "barrier"
        elif mn.startswith("s_load") or mn.startswith("s_memtime") or mn.startswith("s_memrealtime"):
            self.kind = "smem"
            self.wr = set(rg[0]); self.rd = set(sum(rg[1:], []))
        elif mn.startswith("s_cbranch") or mn in ("s_branch", "s_endpgm", "s_setprio", "s_sleep"):
            self.kind = "branch"
            if "scc" in mn: self.rd = {"scc"}
            if "vcc" in mn: self.rd = {"vcc"}
            if "exec" in mn: self.rd = {"exec"}
        elif mn.startswith("s_cmp") or mn.startswith("s_bitcmp"):
            self.kind = "salu"; self.rd = set(sum(rg, [])); self.wr = {"scc"}
        elif mn.startswith("s_"):
            self.kind = "salu"
            self.wr = set(rg[0]); self.rd = set(sum(rg[1:], []))
            if "saveexec" in mn:
                self.wr |= {"exec", "scc"}; self.rd |= {"exec"}
            if mn.startswith("s_cselect"): self.rd |= {"scc"}
            if mn.startswith(("s_addc", "s_subb")): self.rd |= {"scc"}
            if mn.startswith(("s_add", "s_sub", "s_and", "s_or", "s_xor", "s_lshl", "s_lshr", "s_min", "s_max", "s_andn2")): self.wr |= {"scc"}
        else:
            raise ValueError("cannot parse: " + t)

    def __repr__(self):
        return self.text

class Seg:
    def __init__(self, name):
        self.name = name
        self.ins = []
    def __call__(self, s, **kw):
        for l in s.split("\n"):
            l = l.strip()
            if l:
                self.ins.append(Ins(l, **kw))
    def add(self, i):
        self.ins.append(i)

DSK = ("dsr", "dsw")
VMK = ("vml", "vms", "dma")

def insert_waits(trace):
    flat = []
    for si, s in enumerate(trace):
        for k, i in enumerate(s.ins):
            flat.append((s, k, i))
    want = {}
    def req(seg, pos, vm=None, lg=None):
        w = want.setdefault((id(seg), pos), [None, None])
        if vm is not None: w[0] = vm if w[0] is None else min(w[0], vm)
        if lg is not None: w[1] = lg if w[1] is None else min(w[1], lg)
    ds_issue, vm_issue = [], []
    ds_done = vm_done = 0
    pend_ds, pend_vm = {}, {}
    tag_last = {}
    smem_pending = False
    planned = {}
    def count_before(lst, idx):
        lo, hi = 0, len(lst)
        while lo < hi:
            mid = (lo + hi) // 2
            if lst[mid] < idx: lo = mid + 1
            else: hi = mid
        return lo
    last_mfma = None
    for fi, (s, k, i) in enumerate(flat):
        if i.kind == "wait":
            if i.lg is not None:
                ds_done = max(ds_done, len(ds_issue) - i.lg)
                if i.lg == 0: smem_pending = False
            if i.vm is not None:
                vm_done = max(vm_done, len(vm_issue) - i.vm)
            continue
        if i.kind == "waitvm":
            need = i.need if isinstance(i.need, (list, tuple)) else [i.need]
            tgt = max([tag_last[t] + 1 for t in need if t in tag_last] + [0])
            n = len(vm_issue) - tgt
            prev = getattr(i, "resolved", None)
            i.resolved = n if prev is None else min(prev, n)
            vm_done = max(vm_done, tgt)
            continue
        touched = i.rd | i.wr
        need_ds = max([pend_ds[r] + 1 for r in touched if r in pend_ds] + [0])
        need_vm = max([pend_vm[r] + 1 for r in touched if r in pend_vm] + [0])
        if i.kind == "dsr" :
            need_ds = max([pend_ds[r] + 1 for r in i.rd if r in pend_ds] + [0])
        for need, done, issue, which in ((need_ds, ds_done, ds_issue, "lg"), (need_vm, vm_done, vm_issue, "vm")):
            if need > done:
                pos_f = fi
                if last_mfma is not None and flat[last_mfma][0] is s and issue[need - 1] <= last_mfma \
                        and flat[last_mfma][1] < k and getattr(s, "hoist", True):
                    pos_f = last_mfma + 1
                n = count_before(issue, pos_f) - need
                assert n >= 0
                lim = 15 if which == "lg" else 63
                n = min(n, lim)
                seg_pos = flat[pos_f][1] if pos_f < len(flat) and flat[pos_f][0] is s else k
                if which == "lg":
                    req(s, seg_pos, lg=n); ds_done = max(ds_done, count_before(issue, pos_f) - n)
                else:
                    req(s, seg_pos, vm=n); vm_done = max(vm_done, count_before(issue, pos_f) - n)
        for r in i.wr:
            pend_ds.pop(r, None); pend_vm.pop(r, None)
        if i.kind in DSK:
            if i.kind == "dsr":
                for r in i.wr: pend_ds[r] = len(ds_issue)
            ds_issue.append(fi)
        if i.kind in VMK:
            if i.kind == "vml":
                for r in i.wr: pend_vm[r] = len(vm_issue)
            if i.tag is not None: tag_last[i.tag] = len(vm_issue)
            vm_issue.append(fi)
        pend_ds = {r: o for r, o in pend_ds.items() if o >= ds_done}
        pend_vm = {r: o for r, o in pend_vm.items() if o >= vm_done}
        if i.kind == "mfma": last_mfma = fi
    seen = set()
    for s in trace:
        if id(s) in seen: continue
        seen.add(id(s))
        out = []
        for k, i in enumerate(s.ins + [None]):
            w = want.get((id(s), k))
            if w:
                t = "s_waitcnt"
                if w[0] is not None: t += f" vmcnt({w[0]})"
                if w[1] is not None: t += f" lgkmcnt({w[1]})"
                out.append(Ins(t))
            if i is None: break
            if i.kind == "waitvm":
                assert i.resolved <= 63, i.resolved
                out.append(Ins(f"s_waitcnt vmcnt({i.resolved})"))
            else:
                out.append(i)
        s.ins = out

def check(trace, name=""):
    flat = [i for s in trace for i in s.ins if i.kind != "label"]
    errs = []
    dsq, vmq = [], []
    pend = {}
    last = {}
    t = 0
    mf_w, mf_c, va_w, tr_w, sg_w, st_data = {}, {}, {}, {}, {}, {}
    m0_w = -100
    exec_w = -100
    for i in flat:
        def err(msg): errs.append(f"{name}: {msg}: {i.text}")
        if i.kind == "wait":
            if i.lg is not None:
                while len(dsq) > i.lg:
                    o = dsq.pop(0)
                    for r in o.wr:
                        if pend.get(r) is o: del pend[r]
            if i.vm is not None:
                while len(vmq) > i.vm:
                    o = vmq.pop(0)
                    for r in o.wr:
                        if pend.get(r) is o: del pend[r]
            t += 1
            continue
        touched = (i.rd | i.wr) if i.kind not in ("dsr",) else i.rd
        for r in touched:
            if r in pend: err(f"{r} still in flight from [{pend[r].text}]")
        if i.kind == "dsr":
            for r in i.wr:
                if r in pend and pend[r].kind == "vml": err(f"{r} load overlap")
        vec = i.kind in ("valu", "trans")
        for r in i.rd | i.wr:
            if r in mf_w:
                tw, o = mf_w[r]
                if i.kind == "mfma":
                    if r in i.srcA or r in i.srcB:
                        if t - tw < 8 + 1: err(f"MFMA D->A/B {r} dist {t - tw}")
                    elif r in i.srcC and not (set(o.dst) == i.srcC):
                        if t - tw < 6 + 1: err(f"MFMA D->overlapping C {r}")
                    elif r in i.wr and r not in i.srcC:
                        if t - tw < 6 + 1 and set(o.dst) != i.wr: err(f"MFMA D->D overlap {r}")
                elif i.kind != "label":
                    if t - tw < 8 + 1: err(f"MFMA D->{i.kind} {r} dist {t - tw}")
        if vec:
            for r in i.wr:
                if r in mf_c and t - mf_c[r] < 3 + 1: err(f"MFMA C read -> VALU write {r}")
                if r in st_data and t - st_data[r] < 2 + 1: err(f"store data WAR {r}")
        if i.kind == "mfma":
            for r in i.rd:
                if r in va_w and t - va_w[r] < 2 + 1: err(f"VALU->MFMA {r} dist {t - va_w[r]}")
            if t - exec_w < 4 + 1: err("exec write -> MFMA")
        if i.kind == "valu" or i.kind in ("dsw", "dsr", "vms", "vml", "dma"):
            if i.kind == "valu":
                for r in i.rd:
                    if r in tr_w and t - tr_w[r] < 1 + 1: err(f"trans->VALU {r}")
        if vec and (i.mn.startswith("v_permlane")):
            for r in i.rd:
                if r in va_w and t - va_w[r] < 2 + 1: err(f"VALU->permlane {r}")
        if vec and i.mn.startswith(("v_readfirstlane", "v_readlane")):
            for r in i.rd:
                if r in va_w and t - va_w[r] < 1 + 1: err(f"VALU->readlane {r}")
        if vec:
            for r in i.rd:
                if (r[0] == "s" or r == "vcc") and r in sg_w and t - sg_w[r] < 2 + 1: err(f"VALU sgpr write->VALU read {r}")
        if i.kind in VMK:
            for r in i.rd:
                if r[0] == "s" and r in sg_w and t - sg_w[r] < 5 + 1: err(f"VALU sgpr write->VMEM {r}")
        if i.kind == "dma" and t - m0_w < 1 + 1: err("m0 write -> DMA")
        if i.kind == "mfma":
            for r in i.wr: mf_w[r] = (t, i)
            for r in i.srcC: mf_c[r] = t
        else:
            for r in i.wr: mf_w.pop(r, None) if (r in mf_w and t - mf_w[r][0] > 20) else None
        if vec:
            for r in i.wr:
                va_w[r] = t
                if i.kind == "trans": tr_w[r] = t
                else: tr_w.pop(r, None)
                if r[0] == "s" or r == "vcc": sg_w[r] = t
                if r == "exec": exec_w = t
        elif i.kind == "salu":
            for r in i.wr:
                sg_w.pop(r, None)
                if r == "m0": m0_w = t
        if i.kind in DSK:
            dsq.append(i)
            if i.kind == "dsr":
                for r in i.wr: pend[r] = i
            if len(dsq) > 64: pass
        if i.kind in VMK:
            vmq.append(i)
            if i.kind == "vml":
                for r in i.wr: pend[r] = i
            if i.kind == "vms" and ("x4" in i.mn or "x3" in i.mn):
                for r in i.data: st_data[r] = t
            if len(vmq) > 63 + 0: pass
        t += i.n if i.kind == "nop" else 1
    return errs

def text_of(seg):
    out = []
    for i in seg.ins:
        out.append(i.text if i.kind == "label" else "    " + i.text)
    return "\n".join(out) + "\n"
```

```python
from core import *

RB = 65536
SLOT = 16384
WOB = 0
FLAGB = 49152
WS_WOF = 41943040
SCALE = 0x3DB8AA3B
NKT = 32

sW = 3
SX, SWQ, SK, SV, SWO, SWOF, SO = 8, 12, 16, 20, 24, 28, 32
sXo = 36
sWoff, sKoff, sVoff = 41, 42, 43
sK = [44, 45, 46]; sV = [47, 48, 49]
sD, sT, sLoop, sRBw = 50, 51, 52, 53
sScale = 54
sH, sB, sBr, sP = 56, 57, 58, 59
sWof, sQB, sOoff = 60, 62, 63
srd = lambda b: f"s[{b}:{b+3}]"

vKrd, vVrd, vQrd, vDma = 0, 1, 2, 3
vL = 4
vT = 9
AR, QR, BX, BY, BZ, QB, OV, XR = 12, 28, 36, 56, 76, 96, 192, 36
vWrd, vWdma, vXld, vWoDma, vWoRd, vLane16 = 1, 4, 5, 6, 7, 8

MF = "v_mfma_f32_16x16x32_bf16"

class Op:
    def __init__(self, text, cost=1, **kw):
        self.text = text; self.cost = cost; self.kw = kw

class Gaps:
    def __init__(self, n):
        self.n = n
        self.sc = [[] for _ in range(n)]
        self.mem = [[] for _ in range(n)]
        self.va = [[] for _ in range(n)]
        self.resv = set()
    def used(self, g):
        return sum(o.cost for o in self.mem[g]) + sum(o.cost for o in self.va[g]) + max(0, len(self.sc[g]) - 1)
    def scalar_free(self, g):
        return not self.sc[g] and g not in self.resv
    def put_scalars(self, ops, start):
        out = []
        g = start
        for o in ops:
            while not self.scalar_free(g): g += 1
            self.sc[g].append(Op(o)); out.append(g); g += 1
        return out

class K1:
    def __init__(self, nt, opt):
        self.nt = nt
        self.opt = opt
        self.nqr = 3 if nt == 5 else 4
        self.n = 16 * nt
        self.lead = opt.get("lead5", 12) if nt == 5 else opt.get("lead4", 10)
        self.ntflag = " nt" if opt.get("nt", True) else ""
        self.plan_E()

    def acc(self, T, t):
        i = T * self.nt + t
        return 256 + 4 * i if i < 64 else OV + 4 * (i - 64)
    def bank(self, tau): return BX if tau % 2 == 0 else BZ
    def S0(self, tau, t): return self.bank(tau) + 4 * t
    def S1(self, t): return BY + 4 * t
    def qreg(self, t, c): return QB + 32 * t + 4 * c
    def xreg(self, ks, t): return XR + ((ks + 1) % 7) * 4 * self.nt + 4 * t
    def aslot(self, f): return AR + 4 * (f % 4)

    def a_order(self):
        o = []
        for c in range(8):
            if self.nt == 5:
                o += [(0, c, t) for t in (0, 1, 2, 3, 4)] + [(1, c, t) for t in (3, 4, 0, 1, 2)]
            else:
                o += [(0, c, t) for t in range(4)] + [(1, c, t) for t in range(4)]
        return o

    def frag_reads(self, kind, f, par=None):
        d = self.aslot(f)
        if kind == "A":
            c, kg = f // 2, f % 2
            return [f"ds_read_b128 {R('v', d, 4)}, v{vKrd} offset:{kg * 8192 + c * 512}"]
        if kind == "B":
            return [f"ds_read_b64_tr_b16 {R('v', d + 2 * hf, 2)}, v{vVrd} offset:{hf * 8192 + f * 256}" for hf in (0, 1)]
        if kind == "QP":
            c, o = f // 2, f % 2
            return [f"ds_read_b64_tr_b16 {R('v', d + 2 * hf, 2)}, v{vWrd} offset:{hf * 8192 + c * 512 + o * 8}" for hf in (0, 1)]
        raise ValueError(kind)

    def q_read(self, j, c):
        return f"ds_read_b128 {R('v', QR + 4 * j, 4)}, v{vQrd} offset:{(j * 8 + c) * 1024}"

    def place_frag_reads(self, G, kind, nxt):
        nt, n = self.nt, self.n
        G.resv |= {nt * f - 1 for f in range(1, 17)}
        if kind == "A" and nt == 5: G.resv |= {10 * c + 2 for c in range(8)} | {10 * c + 3 for c in range(8)}
        for f in range(3, 16):
            g = nt * f - self.lead
            for j, t in enumerate(self.frag_reads(kind, f)):
                G.mem[g + j].append(Op(t))
        if nxt is not None:
            for f in range(3):
                g = n + nt * f - self.lead
                for j, t in enumerate(self.frag_reads(nxt, f)):
                    gg = min(g + j, n - 1)
                    G.mem[gg].append(Op(t))
            if nxt == "A" and nt == 5:
                g0 = n - 5 if kind == "A" else n - 10
                G.mem[g0].append(Op(self.q_read(0, 0)))
                G.mem[g0 + 1].append(Op(self.q_read(1, 0)))
        if kind == "A" and nt == 5:
            for c in range(1, 8):
                G.mem[10 * (c - 1) + 5].append(Op(self.q_read(0, c)))
                G.mem[10 * (c - 1) + 6].append(Op(self.q_read(1, c)))

    def beta(self, G, need):
        g = self.n - self.lead - 1
        while not G.scalar_free(g): g -= 1
        G.sc[g].append(Op("s_barrier"))
        g -= 1
        while not G.scalar_free(g): g -= 1
        G.sc[g].append(Op("WAITVM", need=need))

    def dma_ops(self, srdb, vaddr, soff, m0base, m0lit, tag, step=128, ldsstep=1024, cnt=4):
        out = []
        fl = self.ntflag if srdb in (SK, SV) else ""
        for dq in range(cnt):
            lit = m0lit + dq * (ldsstep - step)
            out.append((f"s_add_u32 m0, s{m0base}, {lit}",
                        Op(f"buffer_load_dwordx4 v{vaddr}, {srd(srdb)}, s{soff} offen offset:{dq * step}{fl} lds", tag=tag)))
        return out

    def place_dma(self, G, ops, gaps):
        for (m0, op), g in zip(ops, gaps):
            G.sc[g - 1].append(Op(m0))
            G.mem[g].insert(0, op)

    def e_ops(self, tau):
        nt, n = self.nt, self.n
        order = self.a_order()
        done = {}
        first = {}
        for p, (kg, c, t) in enumerate(order):
            if c == 7: done[(kg, t)] = p
            if c == 0: first[(kg, t)] = p
        ops = []
        s0_order = sorted(range(nt), key=lambda t: done[(0, t)])
        s1_order = sorted(range(nt), key=lambda t: done[(1, t)])
        for kg, tl in ((0, s0_order), (1, s1_order)):
            for t in tl:
                a = self.S0(tau, t); b = self.S1(t)
                src = a if kg == 0 else b
                rdy = done[(kg, t)] - n + self.opt.get("erdy", 6)
                dl = n + first[(1, t)] - 1 if kg == 1 else n + first[(1, t)] - 1
                for j in range(4):
                    ops.append(dict(id=("e", kg, t, j), text=f"v_exp_f32 v{src + j}, v{src + j}", cost=2, pre=[], rdy=rdy, dl=dl))
                for j in range(4):
                    ops.append(dict(id=("a", kg, t, j), text=f"v_add_f32 v{vL + t}, v{vL + t}, v{src + j}", cost=1,
                                    pre=[("e", kg, t, j)] + ([("a", kg, t, j - 1)] if j else []), rdy=rdy, dl=dl))
                for j in range(2):
                    dst = a + 2 * kg + j
                    pre = [("e", kg, t, 2 * j), ("e", kg, t, 2 * j + 1)]
                    if kg == 0:
                        pre += [("a", 0, t, j)]
                        if j == 1: pre += [("c", 0, t, 0)]
                    else:
                        pre += [("a", 0, t, 2 + j), ("c", 0, t, 1)]
                    ops.append(dict(id=("c", kg, t, j), text=f"v_cvt_pk_bf16_f32 v{dst}, v{src + 2 * j}, v{src + 2 * j + 1}",
                                    cost=1, pre=pre, rdy=rdy, dl=dl))
        return ops

    def plan_E(self):
        n = self.n
        GA = Gaps(n); self.place_frag_reads(GA, "A", "B")
        GB = Gaps(n); self.place_frag_reads(GB, "B", "A")
        self.a_dma_gaps = self.pick_dma_gaps(GA)
        resv = self.opt.get("ereserve", 0)
        def occ(g):
            if g < 0: return GA.used(n + g)
            if g < n: return GB.used(g) + (1 if g in self.b_updates() else 0)
            return GA.used(g - n) + (1 if (g - n) in self.a_dma_gaps else 0)
        ops = self.e_ops(0)
        placed = {}
        start = min(o["rdy"] for o in ops)
        g = start
        remaining = list(ops)
        win = self.opt.get("ewin", 12)
        cap = 2 if self.nt == 5 else 3
        while remaining:
            free = cap - occ(g)
            while free > 0:
                pick = None
                for o in remaining[:win]:
                    if o["rdy"] > g or o["cost"] > free: continue
                    ok = True
                    for p in o["pre"]:
                        if p not in placed: ok = False; break
                        if p[0] == "e" and placed[p] >= g: ok = False; break
                    if not ok: continue
                    if pick is None or (o["cost"] > pick["cost"] and free >= 2 and remaining.index(o) < 8):
                        pick = o
                        if o["cost"] == 2: break
                if pick is None: break
                placed[pick["id"]] = g
                remaining.remove(pick)
                free -= pick["cost"]
            g += 1
            assert g < 2 * n, "softmax schedule does not fit"
        for o in ops:
            assert placed[o["id"]] <= o["dl"], ("deadline", o["id"], placed[o["id"]], o["dl"])
        self.eplace = placed
        self.e_last = max(placed.values())

    def b_updates(self):
        return [self.nt * 15 - self.lead + 2]

    def pick_dma_gaps(self, GA):
        n = self.n
        lo, hi = 10, n - self.lead - 4
        free = [g for g in range(lo, hi) if GA.used(g) == 0 and GA.scalar_free(g - 1)]
        step = (hi - lo) / 8.0
        out = []
        for k in range(8):
            target = lo + k * step
            g = min((x for x in free if x not in out and x - 1 not in out and x + 1 not in out), key=lambda x: abs(x - target))
            out.append(g)
        return sorted(out)

    def place_E(self, G, tau, part):
        n = self.n
        for o in self.e_ops(tau):
            g = self.eplace[o["id"]]
            if part == "head" and g < 0: G.va[n + g].append(Op(o["text"], o["cost"]))
            if part == "mid" and 0 <= g < n: G.va[g].append(Op(o["text"], o["cost"]))
            if part == "tail" and g >= n: G.va[g - n].append(Op(o["text"], o["cost"]))

    def e_exposed(self, s, tau, part):
        n = self.n
        ops = [o for o in self.e_ops(tau) if (part == "mid" and 0 <= self.eplace[o["id"]] < n) or (part == "tail" and self.eplace[o["id"]] >= n)]
        ops.sort(key=lambda o: self.eplace[o["id"]])
        prev = None
        for o in ops:
            if prev is not None and prev["id"][0] == "e" and o["id"][0] != "e" and prev["id"] in o["pre"]:
                s("s_nop 0")
            s(o["text"]); prev = o

    def emit(self, s, mfmas, G):
        for i, m in enumerate(mfmas):
            s(m)
            for o in G.sc[i] + G.mem[i] + G.va[i]:
                s(o.text, **o.kw)

    def qp_phase(self, s, ks):
        nt, n = self.nt, self.n
        G = Gaps(n)
        self.place_frag_reads(G, "QP", "QP" if ks < 13 else None)
        mf = []
        for T in range(16):
            for t in range(nt):
                d = ureg(self.acc(T, t), 4)
                mf.append(f"{MF} {d}, {R('v', self.aslot(T), 4)}, {R('v', self.xreg(ks, t), 4)}, {d if ks else 0}")
        u = ks + 4
        lit = (u % 6) * SLOT
        if u <= 13:
            ops = self.dma_ops(SWQ, vWdma, sWoff, sRBw, lit, f"u{u}"); adv = f"s_add_u32 s{sWoff}, s{sWoff}, {32 * 8192}"
        elif u == 16:
            ops = self.dma_ops(SV, vDma, sVoff, sRBw, lit, "V0"); adv = f"s_add_u32 s{sVoff}, s{sVoff}, {SLOT}"
        else:
            ops = self.dma_ops(SK, vDma, sKoff, sRBw, lit, {14: "u14", 15: "K1", 17: "K0"}[u]); adv = f"s_add_u32 s{sKoff}, s{sKoff}, {SLOT}"
        free = [g for g in range(nt * 2, n - self.lead - 6) if G.used(g) == 0 and G.scalar_free(g - 1)]
        gaps = [free[len(free) * k // 4 + 1] for k in range(4)]
        self.place_dma(G, ops, gaps)
        G.put_scalars([adv], gaps[-1] + 1)
        if 1 <= ks <= 7:
            fr = [g for g in range(1, n) if G.used(g) == 0 and g not in gaps][:nt]
            for t in range(nt):
                G.mem[fr[t]].append(Op(f"buffer_load_dwordx4 {R('v', self.xreg(ks + 6, t), 4)}, v{vXld}, {srd(SX)}, s{sXo + t} offen offset:{(ks + 6) * 64}"))
        if ks == 10:
            fr = [g for g in range(1, n - self.lead - 4) if G.used(g) == 0]
            k = 0
            for j in range(7):
                for hf in (0, 1):
                    G.mem[fr[k]].append(Op(f"ds_read_b64_tr_b16 {R('v', 56 + 4 * j + 2 * hf, 2)}, v{vWoRd} offset:{hf * 14336 + j * 256}")); k += 1
        if ks == 11:
            fr = [g for g in range(1, n - self.lead - 4) if G.used(g) == 0]
            G.put_scalars([f"s_add_u32 s{sT}, s{sWof}, 4096"], 0)
            for j in range(7):
                so = sWof if j < 4 else sT
                G.mem[fr[2 * j + 1]].append(Op(f"buffer_store_dwordx4 {R('v', 56 + 4 * j, 4)}, v{vLane16}, {srd(SWOF)}, s{so} offen offset:{(j % 4) * 1024}"))
        gu = nt * 15 - self.lead + 2
        if ks < 13:
            delta = SLOT if (ks + 1) % 6 else -5 * SLOT
            G.va[gu].append(Op(f"v_add_u32 v{vWrd}, {delta & 0xffffffff:#x}, v{vWrd}"))
        self.beta(G, f"u{ks + 1}")
        self.emit(s, mf, G)

    def conv(self, s):
        nt = self.nt
        s("s_nop 7")
        for t in range(nt): s(f"v_mov_b32 v{vL + t}, 0")
        tmp = [BY, BY + 8, BY + 16, BY + 24]
        k = 0
        for c in range(8):
            for t in range(nt):
                tm = tmp[k % 4]; k += 1
                for o in range(2):
                    a = self.acc(2 * c + o, t)
                    if a >= 256:
                        for j in range(4): s(f"v_accvgpr_read_b32 v{tm + 4 * o + j}, a{a - 256 + j}")
                        for j in (0, 2): s(f"v_pk_mul_f32 {R('v', tm + 4 * o + j, 2)}, {R('v', tm + 4 * o + j, 2)}, s[{sScale}:{sScale + 1}]")
                    else:
                        for j in (0, 2): s(f"v_pk_mul_f32 {R('v', tm + 4 * o + j, 2)}, {R('v', a + j, 2)}, s[{sScale}:{sScale + 1}]")
                if t < self.nqr:
                    d = self.qreg(t, c)
                    for j in range(4): s(f"v_cvt_pk_bf16_f32 v{d + j}, v{tm + 2 * j}, v{tm + 2 * j + 1}")
                else:
                    d = QR + 4 * (t - self.nqr)
                    for j in range(4): s(f"v_cvt_pk_bf16_f32 v{d + j}, v{tm + 2 * j}, v{tm + 2 * j + 1}")
                    s(f"ds_write_b128 v{vQrd}, {R('v', d, 4)} offset:{((t - self.nqr) * 8 + c) * 1024}")
        s("s_waitcnt lgkmcnt(0)")

    def lookahead_first(self, s, kind):
        for f in range(3):
            for t in self.frag_reads(kind, f): s(t)
        if kind == "A" and self.nt == 5:
            s(self.q_read(0, 0)); s(self.q_read(1, 0))

    def a_phase(self, s, tau, nxt, dma, etail, need, static=None):
        nt, n = self.nt, self.n
        G = Gaps(n)
        self.place_frag_reads(G, "A", nxt)
        mf = []
        for (kg, c, t) in self.a_order():
            d = R("v", self.S0(tau, t) if kg == 0 else self.S1(t), 4)
            q = R("v", self.qreg(t, c), 4) if t < self.nqr else R("v", QR + 4 * (t - self.nqr), 4)
            mf.append(f"{MF} {d}, {R('v', self.aslot(2 * c + kg), 4)}, {q}, {d if c else 0}")
        ops = []
        advs = []
        for (what, tgt, tag) in dma:
            sb, so = (SV, sVoff) if what == "V" else (SK, sKoff)
            if isinstance(tgt, tuple): ops += self.dma_ops(sb, vDma, so, sRBw, tgt[0] * SLOT, tag)
            else: ops += self.dma_ops(sb, vDma, so, tgt, 0, tag)
            advs.append(f"s_add_u32 s{so}, s{so}, {SLOT}")
        gaps = self.a_dma_gaps[:len(ops)]
        self.place_dma(G, ops, gaps)
        for k, adv in enumerate(advs): G.put_scalars([adv], gaps[4 * k + 3] + 1)
        if need is not None: self.beta(G, need)
        if etail is not None: self.place_E(G, etail, "tail")
        self.place_E(G, tau, "head")
        gu = nt * 15 - self.lead + 1
        if static is not None:
            G.va[gu + 1].append(Op(f"v_add_u32 v{vKrd}, {static & 0xffffffff:#x}, v{vKrd}"))
        else:
            g0 = G.put_scalars([f"s_sub_u32 s{sD}, s{sK[1]}, s{sK[0]}"], gaps[-1] + 2)[0]
            assert g0 <= gu + 1
            G.va[gu + 1].append(Op(f"v_add_u32 v{vKrd}, s{sD}, v{vKrd}"))
            G.put_scalars([f"s_mov_b32 s{sT}, s{sK[0]}", f"s_mov_b32 s{sK[0]}, s{sK[1]}", f"s_mov_b32 s{sK[1]}, s{sK[2]}",
                           f"s_mov_b32 s{sK[2]}, s{sT}"], g0 + 1)
        self.emit(s, mf, G)

    def b_phase(self, s, tau, nxt, emid, need, czero=False, static=None, loopctl=None):
        nt, n = self.nt, self.n
        G = Gaps(n)
        self.place_frag_reads(G, "B", nxt)
        mf = []
        for T in range(16):
            for t in range(nt):
                d = ureg(self.acc(T, t), 4)
                mf.append(f"{MF} {d}, {R('v', self.aslot(T), 4)}, {R('v', self.S0(tau, t), 4)}, {0 if czero else d}")
        if emid is not None: self.place_E(G, emid, "mid")
        gu = self.b_updates()[0]
        assert gu > nt * 15 - self.lead + 1
        if need is not None: self.beta(G, need)
        if static is not None:
            if static: G.va[gu].append(Op(f"v_add_u32 v{vVrd}, {static & 0xffffffff:#x}, v{vVrd}"))
        else:
            G.put_scalars([f"s_sub_u32 s{sD}, s{sV[1]}, s{sV[0]}", f"s_mov_b32 s{sT}, s{sV[0]}", f"s_mov_b32 s{sV[0]}, s{sV[1]}",
                           f"s_mov_b32 s{sV[1]}, s{sV[2]}", f"s_mov_b32 s{sV[2]}, s{sT}"], 10)
            G.va[gu].append(Op(f"v_add_u32 v{vVrd}, s{sD}, v{vVrd}"))
        if loopctl:
            gs = G.put_scalars([f"s_sub_u32 s{sLoop}, s{sLoop}, 1", f"s_cmp_lg_u32 s{sLoop}, 0"], n - 5)
            assert gs[-1] < n
        self.emit(s, mf, G)

    def l_reduce(self, s):
        nt = self.nt
        for t in range(nt):
            l = vL + t; a = BY + 2 * t; b = a + 1
            s(f"v_mov_b32 v{a}, v{l}\nv_mov_b32 v{b}, v{l}")
        s("s_nop 1")
        for t in range(nt):
            a = BY + 2 * t; s(f"v_permlane32_swap_b32 v{a}, v{a + 1}")
        s("s_nop 1")
        for t in range(nt):
            a = BY + 2 * t; s(f"v_add_f32 v{vL + t}, v{a}, v{a + 1}")
        for t in range(nt):
            l = vL + t; a = BY + 2 * t; b = a + 1
            s(f"v_mov_b32 v{a}, v{l}\nv_mov_b32 v{b}, v{l}")
        s("s_nop 1")
        for t in range(nt):
            a = BY + 2 * t; s(f"v_permlane16_swap_b32 v{a}, v{a + 1}")
        s("s_nop 1")
        for t in range(nt):
            a = BY + 2 * t; s(f"v_add_f32 v{vL + t}, v{a}, v{a + 1}")

    def store_O(self, s):
        nt = self.nt
        s(f"v_subrev_u32 v{vT}, s{sQB}, v{vQrd}")
        for t in range(nt): s(f"v_rcp_f32 v{vL + t}, v{vL + t}")
        s("s_nop 0")
        for t in range(nt):
            s(f"v_mov_b32 v{BZ + 2 * t}, v{vL + t}\nv_mov_b32 v{BZ + 2 * t + 1}, v{vL + t}")
        tmp = [QB, QB + 8, QB + 16, QB + 24]
        outr = [QB + 32, QB + 36, QB + 40, QB + 44, QB + 48, QB + 52]
        k = 0
        for c in range(8):
            s(f"s_add_u32 s{sT}, s{sOoff}, {c * 5120}")
            s(f"s_add_u32 s{sD}, s{sOoff}, {c * 5120 + 4096}")
            for t in range(nt):
                tm = tmp[k % 4]; d = outr[k % 6]; k += 1
                sc = R("v", BZ + 2 * t, 2)
                for o in range(2):
                    a = self.acc(2 * c + o, t)
                    if a >= 256:
                        for j in range(4): s(f"v_accvgpr_read_b32 v{tm + 4 * o + j}, a{a - 256 + j}")
                        for j in (0, 2): s(f"v_pk_mul_f32 {R('v', tm + 4 * o + j, 2)}, {R('v', tm + 4 * o + j, 2)}, {sc}")
                    else:
                        for j in (0, 2): s(f"v_pk_mul_f32 {R('v', tm + 4 * o + j, 2)}, {R('v', a + j, 2)}, {sc}")
                for j in range(4): s(f"v_cvt_pk_bf16_f32 v{d + j}, v{tm + 2 * j}, v{tm + 2 * j + 1}")
                so = sT if t < 4 else sD
                s(f"buffer_store_dwordx4 {R('v', d, 4)}, v{vT}, {srd(SO)}, s{so} offen offset:{(t % 4) * 1024}")
```

```python
from core import *
from k1 import WS_WOF, MF

srd = lambda b: f"s[{b}:{b+3}]"
SA, SB, SOUT = 8, 12, 16
sW, sP, sI, sJ, sBr, sBb = 3, 20, 21, 22, 23, 24
sAo, sAo2, sBo, sBo2, sLoop, sT, sOo = 25, 26, 27, 28, 29, 30, 31
vLane16, vOut, vL = 1, 2, 3
RING = 16
DEPTH = 4

def setup(s):
    s("s_cmp_ge_u32 s2, 256")
    s("s_cbranch_scc1 L2_end")
    s("v_lshrrev_b32 v4, 6, v0")
    s(f"v_and_b32 v{vL}, 63, v0")
    s("s_and_b32 s4, s2, 7\ns_lshr_b32 s5, s2, 3\ns_lshr_b32 s6, s5, 4\ns_lshl_b32 s4, s4, 1")
    s(f"v_readfirstlane_b32 s{sW}, v4")
    s(f"s_load_dwordx2 s[{SA}:{SA+1}], s[0:1], 96")
    s(f"s_load_dwordx2 s[{SOUT}:{SOUT+1}], s[0:1], 80")
    s(f"s_add_u32 s{sP}, s4, s6\ns_bfe_u32 s{sI}, s5, 0x20002\ns_and_b32 s{sJ}, s5, 3")
    s(f"s_lshr_b32 s{sBr}, s{sP}, 3\ns_and_b32 s{sBb}, s{sP}, 7")
    s(f"v_lshlrev_b32 v{vLane16}, 4, v{vL}")
    s(f"v_and_b32 v4, 15, v{vL}\nv_lshrrev_b32 v5, 4, v{vL}\nv_lshlrev_b32 v5, 3, v5\ns_movk_i32 s6, 1792\nv_mad_u32_u24 v{vOut}, v4, s6, v5")
    s("s_waitcnt lgkmcnt(0)")
    def fin(b, size): s(f"s_and_b32 s{b+1}, s{b+1}, 0xffff\ns_mov_b32 s{b+2}, {size}\ns_mov_b32 s{b+3}, 0x20000")
    def addoff(b, so): s(f"s_add_u32 s{b}, s{b}, {so}\ns_addc_u32 s{b+1}, s{b+1}, 0")
    s(f"s_mov_b32 s{SB}, s{SA}\ns_mov_b32 s{SB+1}, s{SA+1}")
    s(f"s_lshl_b32 s6, s{sBr}, 2\ns_add_u32 s6, s6, s{sJ}\ns_lshl_b32 s6, s6, 2\ns_add_u32 s6, s6, s{sW}\ns_mul_i32 s6, s6, {32 * 7168}\ns_add_u32 s6, s6, {WS_WOF}")
    addoff(SA, "s6"); fin(SA, 32 * 7168)
    s(f"s_lshl_b32 s6, s{sP}, 2\ns_add_u32 s6, s6, s{sI}\ns_lshl_b32 s6, s6, 2\ns_add_u32 s6, s6, s{sW}\ns_mul_i32 s6, s6, {32 * 5120}")
    addoff(SB, "s6"); fin(SB, 32 * 5120)
    fin(SOUT, 8 * 304 * 1792)
    s(f"s_mul_i32 s6, s{sBb}, 304\ns_mul_i32 s7, s{sI}, 80\ns_add_u32 s6, s6, s7\ns_mul_i32 s6, s6, 1792")
    s(f"s_mul_i32 s7, s{sBr}, 896\ns_add_u32 s6, s6, s7\ns_mul_i32 s7, s{sJ}, 224\ns_add_u32 s{sOo}, s6, s7")
    s(f"s_mov_b32 s{sAo}, 0\ns_mov_b32 s{sAo2}, 4096\ns_mov_b32 s{sBo}, 0\ns_mov_b32 s{sBo2}, 4096")

class K2:
    def __init__(self, nt, opt):
        self.nt = nt; self.opt = opt
    def slot(self, k): return RING + (k % DEPTH) * 48
    def acc(self, t, j): return 4 * (t * 7 + j)
    def loads(self, k):
        b = self.slot(k); out = []
        fl = self.opt.get("k2flags", "")
        for j in range(7):
            so = sAo if j < 4 else sAo2
            out.append(f"buffer_load_dwordx4 {R('v', b + 4 * j, 4)}, v{vLane16}, {srd(SA)}, s{so} offen offset:{(j % 4) * 1024}")
        for t in range(self.nt):
            so = sBo if t < 4 else sBo2
            out.append(f"buffer_load_dwordx4 {R('v', b + 28 + 4 * t, 4)}, v{vLane16}, {srd(SB)}, s{so} offen offset:{(t % 4) * 1024}")
        order = [0, 7] + list(range(8, 7 + self.nt)) + list(range(1, 7))
        return [out[i] for i in order]
    def adv(self):
        return [f"s_add_u32 s{sAo}, s{sAo}, 7168", f"s_add_u32 s{sAo2}, s{sAo2}, 7168",
                f"s_add_u32 s{sBo}, s{sBo}, 5120", f"s_add_u32 s{sBo2}, s{sBo2}, 5120"]
    def step(self, s, k, first=False):
        b = self.slot(k)
        ld = self.loads(k + DEPTH - 1)
        mf = []
        for j in range(7):
            for t in range(self.nt):
                d = R("a", self.acc(t, j), 4)
                mf.append(f"{MF} {d}, {R('v', b + 4 * j, 4)}, {R('v', b + 28 + 4 * t, 4)}, {0 if first else d}")
        every = max(1, len(mf) // (len(ld) + 1))
        li = 0
        for i, m in enumerate(mf):
            s(m)
            if i % every == 0 and li < len(ld):
                s(ld[li]); li += 1
        while li < len(ld): s(ld[li]); li += 1
        for a in self.adv(): s(a)

    def build(self):
        nt = self.nt; sfx = f"_{nt}"
        pre = Seg("k2pre" + sfx); pre.add(Ins(f"L2_v{nt}:"))
        for k in range(DEPTH - 1):
            for l in self.loads(k): pre(l)
            for a in self.adv(): pre(a)
        for k in range(DEPTH): self.step(pre, k, first=(k == 0))
        pre(f"s_mov_b32 s{sLoop}, 7")
        body = Seg("k2body" + sfx); body.add(Ins(f"L2_loop{sfx}:"))
        for k in range(DEPTH): self.step(body, k)
        body(f"s_sub_u32 s{sLoop}, s{sLoop}, 1\ns_cmp_lg_u32 s{sLoop}, 0\ns_cbranch_scc1 L2_loop{sfx}")
        post = Seg("k2post" + sfx)
        post("s_waitcnt vmcnt(0)")
        post("s_nop 7")
        ntile = 7 * nt
        per = (ntile + 3) // 4
        owner = lambda u: u // per
        for w in range(4):
            post.add(Ins(f"L2_w{w}{sfx}:")) if False else None
        post(f"s_cmp_eq_u32 s{sW}, 0\ns_cbranch_scc1 L2_r0{sfx}\ns_cmp_eq_u32 s{sW}, 1\ns_cbranch_scc1 L2_r1{sfx}\ns_cmp_eq_u32 s{sW}, 2\ns_cbranch_scc1 L2_r2{sfx}\ns_branch L2_r3{sfx}")
        tails = []
        for w in range(4):
            r = Seg(f"k2red{w}" + sfx); r.add(Ins(f"L2_r{w}{sfx}:"))
            r(f"v_add_u32 v4, 32768, v{vLane16}\nv_add_u32 v5, 65536, v{vLane16}\nv_add_u32 v6, 98304, v{vLane16}")
            def addr(off):
                base = off // 32768
                return (vLane16, 4, 5, 6)[base], off % 32768
            for u in range(ntile):
                o = owner(u)
                if o == w: continue
                idx = w if w < o else w - 1
                va, off = addr((u * 3 + idx) * 1024)
                t, j = divmod(u, 7)
                r(f"ds_write_b128 v{va}, {R('a', self.acc(t, j), 4)} offset:{off}")
            r("s_waitcnt lgkmcnt(0)")
            r("s_barrier")
            mine = [u for u in range(ntile) if owner(u) == w]
            for n, u in enumerate(mine):
                for idx in range(3):
                    va, off = addr((u * 3 + idx) * 1024)
                    r(f"ds_read_b128 {R('v', RING + n * 16 + 4 * idx, 4)}, v{va} offset:{off}")
            for n, u in enumerate(mine):
                t, j = divmod(u, 7)
                b = RING + n * 16
                for e in range(4): r(f"v_accvgpr_read_b32 v{b + 12 + e}, a{self.acc(t, j) + e}")
                for e in range(4): r(f"v_add_f32 v{b + 12 + e}, v{b + 12 + e}, v{b + e}")
                for e in range(4): r(f"v_add_f32 v{b + 4 + e}, v{b + 4 + e}, v{b + 8 + e}")
                for e in range(4): r(f"v_add_f32 v{b + 12 + e}, v{b + 12 + e}, v{b + 4 + e}")
                r(f"v_cvt_pk_bf16_f32 v{b}, v{b + 12}, v{b + 13}\nv_cvt_pk_bf16_f32 v{b + 1}, v{b + 14}, v{b + 15}")
                r(f"s_add_u32 s{sT}, s{sOo}, {t * 16 * 1792 + j * 32}")
                r(f"buffer_store_dwordx2 {R('v', b, 2)}, v{vOut}, {srd(SOUT)}, s{sT} offen")
            r("s_waitcnt vmcnt(0)")
            r("s_endpgm")
            tails.append(r)
        return pre, body, post, tails

def gen_k2(opt):
    head = Seg("k2head"); setup(head)
    head(f"s_cmp_eq_u32 s{sI}, 3\ns_cbranch_scc1 L2_v4")
    segs = [head]; errs = []
    for nt in (5, 4):
        k = K2(nt, opt)
        pre, body, post, tails = k.build()
        for tl in tails:
            pass
        insert_waits([head, pre, body, body, post, tails[0]])
        for tl in tails[1:]:
            tmp = Seg("tmp"); insert_waits([tl])
        for tl in tails: errs += check([head, pre, body, body, post, tl], f"k2nt{nt}")
        segs += [pre, body, post] + tails
    end = Seg("k2end"); end.add(Ins("L2_end:")); end("s_endpgm")
    segs.append(end)
    return segs, errs
```

```python
import sys, os, json
sys.path.insert(0, os.path.dirname(os.path.abspath(__file__)))
from core import *
import k1 as K
from k1 import *
from asmlib import NAME, kernel_header, kernel_desc
import k2 as K2m

def setup_k1(s):
    s("s_cmp_ge_u32 s2, 256")
    s("s_cbranch_scc1 L1_end")
    s("v_lshrrev_b32 v9, 6, v0")
    s("v_and_b32 v10, 63, v0")
    s(f"s_and_b32 s4, s2, 7\ns_lshr_b32 s5, s2, 3\ns_lshr_b32 s6, s5, 4\ns_lshl_b32 s4, s4, 1")
    s(f"v_readfirstlane_b32 s{sW}, v9")
    s(f"s_add_u32 s{sP}, s4, s6\ns_and_b32 s{sH}, s5, 15\ns_lshr_b32 s{sBr}, s{sP}, 3\ns_and_b32 s{sB}, s{sP}, 7")
    s(f"s_mul_i32 s4, s{sBr}, 40")
    s("s_add_u32 s4, s0, s4\ns_addc_u32 s5, s1, 0")
    s(f"s_load_dwordx2 s[{SX}:{SX+1}], s[4:5], 0")
    s(f"s_load_dwordx2 s[{SK}:{SK+1}], s[4:5], 8")
    s(f"s_load_dwordx2 s[{SV}:{SV+1}], s[4:5], 16")
    s(f"s_load_dwordx2 s[{SWQ}:{SWQ+1}], s[4:5], 24")
    s(f"s_load_dwordx2 s[{SWO}:{SWO+1}], s[4:5], 32")
    s(f"s_load_dwordx2 s[{SO}:{SO+1}], s[0:1], 96")
    l = "v10"; t = "v11"; t2 = "v9"
    s(f"v_lshrrev_b32 {t}, 4, {l}\nv_lshlrev_b32 {t}, 5, {t}\nv_and_b32 {t2}, 1, {l}\nv_lshlrev_b32 {t2}, 4, {t2}\nv_add_u32 {t}, {t}, {t2}")
    s(f"v_bfe_u32 {t2}, {l}, 1, 3")
    s(f"v_lshl_add_u32 v{vDma}, {t2}, 9, {t}")
    s(f"s_movk_i32 s6, 896\nv_mad_u32_u24 v{vWoDma}, {t2}, s6, {t}")
    s(f"v_lshrrev_b32 v{vWdma}, 2, {t2}\nv_lshlrev_b32 v{vWdma}, 3, v{vWdma}\nv_and_b32 {t2}, 3, {t2}\nv_add_u32 v{vWdma}, v{vWdma}, {t2}")
    s(f"v_lshl_add_u32 v{vWdma}, v{vWdma}, 13, {t}")
    s(f"v_and_b32 {t}, 15, {l}\nv_lshrrev_b32 {t2}, 4, {l}\nv_lshlrev_b32 {t2}, 4, {t2}\nv_mad_u32_u24 v{vXld}, {t}, s6, {t2}")
    s(f"v_lshlrev_b32 v{vLane16}, 4, {l}")
    s(f"v_bfe_u32 {t}, {l}, 3, 1\nv_lshlrev_b32 v{vKrd}, 12, {t}")
    s(f"v_lshrrev_b32 {t}, 5, {l}\nv_lshl_add_u32 v{vKrd}, {t}, 8, v{vKrd}")
    s(f"v_and_b32 {t}, 7, {l}\nv_lshl_add_u32 v{vKrd}, {t}, 5, v{vKrd}")
    s(f"v_bfe_u32 {t}, {l}, 4, 1\nv_lshl_add_u32 v{vKrd}, {t}, 4, v{vKrd}")
    s(f"v_add_u32 v{vKrd}, {RB + 2 * SLOT}, v{vKrd}")
    s(f"v_lshrrev_b32 {t}, 5, {l}\nv_lshlrev_b32 v{vWrd}, 12, {t}")
    s(f"v_bfe_u32 {t2}, {l}, 2, 3\nv_lshl_add_u32 v{vWrd}, {t2}, 5, v{vWrd}")
    s(f"v_bfe_u32 {t2}, {l}, 1, 1\nv_lshl_add_u32 v{vWrd}, {t2}, 8, v{vWrd}")
    s(f"v_and_b32 {t2}, 1, {l}\nv_lshl_add_u32 v{vWrd}, {t2}, 4, v{vWrd}")
    s(f"v_add_u32 v{vWrd}, {RB}, v{vWrd}")
    s(f"s_movk_i32 s7, 7168\nv_bfe_u32 {t2}, {l}, 2, 3\nv_lshlrev_b32 {t2}, 5, {t2}\nv_mad_u32_u24 v{vWoRd}, {t}, s7, {t2}")
    s(f"v_and_b32 {t2}, 3, {l}\nv_lshl_add_u32 v{vWoRd}, {t2}, 3, v{vWoRd}")
    s(f"s_mul_i32 s6, s{sW}, 1792\nv_add_u32 v{vWoRd}, s6, v{vWoRd}")
    s(f"s_lshl_b32 s{sQB}, s{sW}, 14\nv_add_u32 v{vQrd}, s{sQB}, v{vLane16}")
    s("s_waitcnt lgkmcnt(0)")
    def fin(b, size):
        s(f"s_and_b32 s{b+1}, s{b+1}, 0xffff")
        if isinstance(size, int): s(f"s_mov_b32 s{b+2}, {size}")
        else: s(size)
        s(f"s_mov_b32 s{b+3}, 0x20000")
    def addoff(b, so): s(f"s_add_u32 s{b}, s{b}, {so}\ns_addc_u32 s{b+1}, s{b+1}, 0")
    s(f"s_mov_b32 s{SWOF}, s{SO}\ns_mov_b32 s{SWOF+1}, s{SO+1}")
    s(f"s_mul_i32 s6, s{sB}, 272384"); addoff(SX, "s6"); fin(SX, 272384)
    s(f"s_lshl_b32 s6, s{sH}, 9"); addoff(SWQ, "s6"); fin(SWQ, f"s_sub_u32 s{SWQ+2}, 3670016, s6")
    s(f"s_lshl_b32 s6, s{sB}, 4\ns_add_u32 s6, s6, s{sH}\ns_lshl_b32 s6, s6, 19")
    addoff(SK, "s6"); fin(SK, 524288); addoff(SV, "s6"); fin(SV, 524288)
    s(f"s_lshl_b32 s6, s{sH}, 3\ns_add_u32 s7, s6, s{sB}")
    s(f"s_mul_i32 s6, s7, 28672"); addoff(SWO, "s6"); fin(SWO, 28672)
    s(f"s_mul_i32 s6, s{sBr}, 3670016\ns_add_u32 s6, s6, {WS_WOF}"); addoff(SWOF, "s6"); fin(SWOF, 3670016)
    s(f"s_lshl_b32 s6, s{sW}, 7\ns_add_u32 s6, s6, s7\ns_mul_i32 s{sWof}, s6, 7168")
    s(f"s_lshl_b32 s6, s{sP}, 2\ns_add_u32 s6, s6, s{sW}\ns_mul_i32 s6, s6, 655360"); addoff(SO, "s6"); fin(SO, 655360)
    s(f"s_mul_i32 s{sOoff}, s{sH}, 40960")
    s(f"s_mul_i32 s6, s{sW}, 71680")
    for t_ in range(5): s(f"s_add_u32 s{sXo + t_}, s6, {t_ * 14336}")
    s(f"s_lshl_b32 s6, s{sW}, 12\ns_add_u32 s{sRBw}, s6, {RB}")
    s(f"s_mov_b32 s{sKoff}, s6\ns_mov_b32 s{sVoff}, s6")
    s(f"s_and_b32 s6, s{sW}, 1\ns_lshl_b32 s6, s6, 4\ns_lshr_b32 s7, s{sW}, 1\ns_lshl_b32 s7, s7, 2\ns_add_u32 s6, s6, s7\ns_lshl_b32 s{sWoff}, s6, 13")
    s(f"s_mov_b32 s{sScale}, {SCALE:#x}\ns_mov_b32 s{sScale+1}, {SCALE:#x}")
    for j, sl in enumerate((5, 1, 3)): s(f"s_add_u32 s{sK[j]}, s{sRBw}, {sl * SLOT}")
    for j, sl in enumerate((0, 2, 4)): s(f"s_add_u32 s{sV[j]}, s{sRBw}, {sl * SLOT}")

def prologue_loads(s, k):
    nt = k.nt
    def unit(u):
        for m0, op in k.dma_ops(SWQ, vWdma, sWoff, sRBw, u * SLOT, f"u{u}"):
            s(m0); s("s_nop 0"); s(op.text, **op.kw)
        s(f"s_add_u32 s{sWoff}, s{sWoff}, {32 * 8192}")
    def xl(ks):
        for t in range(nt):
            s(f"buffer_load_dwordx4 {R('v', k.xreg(ks, t), 4)}, v{vXld}, {srd(SX)}, s{sXo + t} offen offset:{ks * 64}")
    unit(0); xl(0); unit(1); xl(1); unit(2); xl(2); unit(3); xl(3)
    s(f"s_mul_i32 s6, s{sW}, 7168")
    for dq in range(7):
        s(f"s_add_u32 m0, s6, {WOB + dq * 896}"); s("s_nop 0")
        s(f"buffer_load_dwordx4 v{vWoDma}, {srd(SWO)}, s6 offen offset:{dq * 128} lds", tag="wo")
    xl(4); xl(5); xl(6)
    s("WAITVM", need="u0")
    s("s_barrier")
    k.lookahead_first(s, "QP")

def build_variant(nt, opt):
    k = K1(nt, opt)
    sfx = f"_{nt}"
    pre = Seg("pre" + sfx)
    pre.add(Ins(f"L1_v{nt}:"))
    prologue_loads(pre, k)
    for ks in range(14): k.qp_phase(pre, ks)
    k.conv(pre)
    s = pre
    s(f"v_subrev_u32 v{vT}, s{sQB}, v{vQrd}\nv_lshrrev_b32 v{vT}, 4, v{vT}")
    s(f"v_lshrrev_b32 v{vT+1}, 5, v{vT}\nv_lshlrev_b32 v{vVrd}, 12, v{vT+1}")
    s(f"v_bfe_u32 v{vT+1}, v{vT}, 2, 3\nv_lshl_add_u32 v{vVrd}, v{vT+1}, 5, v{vVrd}")
    s(f"v_and_b32 v{vT+1}, 3, v{vT}\nv_lshl_add_u32 v{vVrd}, v{vT+1}, 3, v{vVrd}")
    s(f"v_add_u32 v{vVrd}, {RB + 4 * SLOT}, v{vVrd}")
    k.lookahead_first(pre, "A")
    k.a_phase(pre, 0, "A", [], None, "K1", static=SLOT)
    k.e_exposed(pre, 0, "mid")
    k.a_phase(pre, 1, "B", [("V", (0,), "V1"), ("K", (1,), "K1")], 0, "V0", static=2 * SLOT)
    k.b_phase(pre, 0, "A", 1, "K0", czero=True, static=-4 * SLOT)
    pre(f"s_mov_b32 s{sLoop}, 14")
    body = Seg("body" + sfx)
    body.add(Ins(f"L1_loop{sfx}:"))
    for tau in (2, 3):
        k.a_phase(body, tau, "B", [("V", sV[1], f"V{tau % 2}"), ("K", sK[2], f"K{tau % 2}")], tau - 1, f"V{(tau - 1) % 2}")
        k.b_phase(body, tau - 1, "A", tau, f"K{(tau + 1) % 2}", loopctl=(tau == 3))
    body(f"s_cbranch_scc1 L1_loop{sfx}")
    post = Seg("post" + sfx)
    k.a_phase(post, 30, "B", [("V", (4,), "V0"), ("V", (5,), "VL")], 29, "V1", static=2 * SLOT)
    k.b_phase(post, 29, "A", 30, "K1", static=2 * SLOT)
    k.a_phase(post, 31, "B", [], 30, "V0", static=0)
    k.b_phase(post, 30, "B", 31, "VL", static=SLOT)
    k.e_exposed(post, 31, "tail")
    post("s_nop 1")
    k.b_phase(post, 31, None, None, None, static=0)
    post("s_nop 7")
    k.l_reduce(post)
    k.store_O(post)
    post("s_waitcnt vmcnt(0)")
    post("s_endpgm")
    return k, pre, body, post

def gen_k1(opt):
    head = Seg("head")
    setup_k1(head)
    head(f"s_cmp_eq_u32 s{sW}, 3")
    head("s_cbranch_scc1 L1_v4")
    segs = [head]
    errs = []
    for nt in (5, 4):
        k, pre, body, post = build_variant(nt, opt)
        trace = [head, pre, body, body, post]
        insert_waits(trace)
        errs += check(trace, f"nt{nt}")
        segs += [pre, body, post]
        if opt.get("verbose"):
            print(f"nt={nt} E placement range {min(k.eplace.values())}..{k.e_last}, dma gaps {k.a_dma_gaps}", file=sys.stderr)
    end = Seg("end"); end.add(Ins("L1_end:")); end("s_endpgm")
    segs.append(end)
    return segs, errs

def main():
    opt = {}
    out = sys.argv[1]
    for a in sys.argv[2:]:
        kk, v = a.split("=")
        opt[kk] = int(v)
    segs, errs = gen_k1(opt)
    for e in errs[:40]: print("HAZARD", e, file=sys.stderr)
    if errs: print(len(errs), "hazards", file=sys.stderr)
    k1n = NAME + "_kernel"
    hdr = open(os.path.join(os.path.dirname(os.path.abspath(__file__)), "header.txt")).read()
    k2n = "outproj_kernel"
    txt = hdr + f"; @launch kernel={k1n} grid=(256,1,1) block=(256,1,1) lds=163840\n"
    use2 = opt.get("k2", 1)
    if use2: txt += f"; @launch kernel={k2n} grid=(256,1,1) block=(256,1,1) lds=107520\n"
    txt += '.amdgcn_target "amdgcn-amd-amdhsa--gfx950"\n.text\n' + kernel_header(k1n)
    for s in segs: txt += text_of(s)
    if use2:
        segs2, errs2 = K2m.gen_k2(opt)
        for e in errs2[:40]: print("HAZARD", e, file=sys.stderr)
        txt += kernel_header(k2n)
        for s in segs2: txt += text_of(s)
    txt += '.section .rodata,"a"\n.p2align 6\n' + kernel_desc(k1n)
    if use2: txt += ".p2align 6\n" + kernel_desc(k2n, vgpr=400, accum=256)
    open(out, "w").write(txt)

if __name__ == "__main__":
    main()
```

```python
import sys, os
sys.path.insert(0, os.path.dirname(os.path.abspath(__file__)))
from asmlib import *

def gen(fname, body, iters=200, pre=None, lds=163840, nmfma=None):
    a = Asm()
    kn = NAME + "_kernel"
    a("s_cmp_ge_u32 s2, 256")
    a("s_cbranch_scc1 L_end")
    a("s_load_dwordx2 s[4:5], s[0:1], 8")
    a("s_load_dwordx2 s[6:7], s[0:1], 96")
    a("s_load_dwordx2 s[20:21], s[0:1], 16")
    a("v_and_b32 v1, 63, v0")
    a("v_lshrrev_b32 v2, 6, v0")
    a("s_nop 1")
    a("v_readfirstlane_b32 s3, v2")
    a("s_waitcnt lgkmcnt(0)")
    a("s_mov_b32 s8, s4\ns_mov_b32 s9, s5\ns_mov_b32 s10, 0x4000000\ns_mov_b32 s11, 0x20000")
    a("s_mov_b32 s12, s6\ns_mov_b32 s13, s7\ns_mov_b32 s14, 0x100000\ns_mov_b32 s15, 0x20000")
    a("s_mov_b32 s16, s20\ns_mov_b32 s17, s21\ns_mov_b32 s18, 0x4000000\ns_mov_b32 s19, 0x20000")
    a("v_lshlrev_b32 v3, 4, v1")
    a("s_lshl_b32 s22, s2, 18")
    a("s_mul_i32 s23, s3, 40960")
    a("s_add_u32 s22, s22, s23")
    a("s_mov_b32 s24, s23")
    a("s_mov_b32 s25, 0")
    a.label("L_fill")
    a("s_mov_b32 m0, s24")
    a("s_nop 0")
    a("buffer_load_dwordx4 v3, s[8:11], s22 offen lds")
    a("s_add_u32 s22, s22, 1024\ns_add_u32 s24, s24, 1024\ns_add_u32 s25, s25, 1\ns_cmp_lt_u32 s25, 40\ns_cbranch_scc1 L_fill")
    a("s_lshl_b32 s22, s2, 18")
    for r in range(16, 256, 4):
        a(f"buffer_load_dwordx4 v[{r}:{r+3}], v3, s[8:11], s22 offen offset:{(r*16) % 4096}")
        if r % 64 == 60: a("s_waitcnt vmcnt(0)")
    a("s_waitcnt vmcnt(0)")
    for r in range(256):
        a(f"v_accvgpr_write_b32 a{r}, 0")
    if pre: pre(a)
    a("s_waitcnt vmcnt(0) lgkmcnt(0)")
    a("s_barrier")
    a("s_memtime s[30:31]")
    a("s_memrealtime s[32:33]")
    a("s_waitcnt lgkmcnt(0)")
    a(f"s_mov_b32 s40, {iters}")
    a.label("L_loop")
    body(a)
    a("s_sub_u32 s40, s40, 1")
    a("s_cmp_lg_u32 s40, 0")
    a("s_cbranch_scc1 L_loop")
    a("s_waitcnt vmcnt(0) lgkmcnt(0)")
    a("s_memtime s[34:35]")
    a("s_memrealtime s[36:37]")
    a("s_waitcnt lgkmcnt(0)")
    a("s_sub_u32 s34, s34, s30")
    a("s_sub_u32 s36, s36, s32")
    a("v_mov_b32 v4, s34")
    a("v_mov_b32 v5, s36")
    a("s_lshl_b32 s22, s2, 5")
    a("s_lshl_b32 s23, s3, 3")
    a("s_add_u32 s22, s22, s23")
    a("v_mov_b32 v6, s22")
    a("v_cmp_eq_u32 vcc, 0, v1")
    a("s_and_saveexec_b64 s[26:27], vcc")
    a("buffer_store_dwordx2 v[4:5], v6, s[12:15], 0 offen")
    a("s_waitcnt vmcnt(0)")
    a.label("L_end")
    a("s_endpgm")
    txt = f"; @launch grid=(256,1,1) block=(256,1,1) lds={lds}\n"
    txt += '.amdgcn_target "amdgcn-amd-amdhsa--gfx950"\n.text\n' + kernel_header(kn) + a.text()
    txt += '.section .rodata,"a"\n.p2align 6\n' + kernel_desc(kn)
    open(fname, "w").write(txt)

def mf(i, shape=16):
    if shape == 16:
        acc = (i % 64) * 4
        A = 64 + ((i // 5) % 8) * 4
        Bf = 128 + (i % 20) * 4
        return f"v_mfma_f32_16x16x32_bf16 a[{acc}:{acc+3}], v[{A}:{A+3}], v[{Bf}:{Bf+3}], a[{acc}:{acc+3}]"
    acc = (i % 16) * 16
    A = 64 + ((i // 2) % 8) * 4
    Bf = 128 + (i % 20) * 4
    return f"v_mfma_f32_32x32x16_bf16 a[{acc}:{acc+15}], v[{A}:{A+3}], v[{Bf}:{Bf+3}], a[{acc}:{acc+15}]"

def filler(kind, j):
    r = 16 + (j % 40)
    if kind == "exp": return f"v_exp_f32 v{r}, v{r}"
    if kind == "add": return f"v_add_f32 v{r}, v{r}, v60"
    if kind == "cvt": return f"v_cvt_pk_bf16_f32 v{r}, v{r}, v{r+1}"
    if kind == "tr":  return f"ds_read_b64_tr_b16 v[{216 + (j % 8) * 2}:{217 + (j % 8) * 2}], v7 offset:{(j % 32) * 256}"
    if kind == "rd":  return f"ds_read_b128 v[{232 + (j % 4) * 4}:{235 + (j % 4) * 4}], v8 offset:{(j % 16) * 1024}"
    if kind == "nop": return "s_nop 0"
    if kind == "salu": return f"s_add_u32 s50, s50, 1"
    if kind == "wait": return "s_waitcnt lgkmcnt(4)"
    raise ValueError(kind)

def pre_addr(a):
    a("v_and_b32 v9, 63, v0")
    a("v_lshlrev_b32 v8, 4, v9")
    a("v_lshrrev_b32 v10, 5, v9")
    a("v_lshlrev_b32 v7, 12, v10")
    a("v_bfe_u32 v10, v9, 2, 3")
    a("v_lshlrev_b32 v10, 5, v10")
    a("v_add_u32 v7, v7, v10")
    a("v_and_b32 v10, 3, v9")
    a("v_lshlrev_b32 v10, 3, v10")
    a("v_add_u32 v7, v7, v10")
    a("v_mov_b32 v60, 0")

def mk(pattern, shape=16, n=160):
    def body(a):
        j = 0
        for i in range(n):
            a(mf(i, shape))
            for k in pattern[i % len(pattern)]:
                a(filler(k, j)); j += 1
    return body


def realmix(a):
    j = 0
    for i in range(80):
        a(mf(i))
        if i % 5 in (0, 2): a(filler("rd", j)); j += 1
    seq = []
    for t in range(20):
        seq += [["exp"], ["exp"], ["add", "add"], ["cvt"]]
    for i in range(80):
        a(mf(80 + i))
        if i % 5 in (0, 2): a(filler("tr", j)); j += 1
        for k in seq[i]:
            a(filler(k, j)); j += 1

tests = {
  "m16": ([[]], 16),
  "m16_rd_add2": ([["rd", "add", "add"]], 16),
  "m16_tr_add2": ([["tr", "add", "add"]], 16),
  "m16_tr_exp1": ([["tr", "exp"]], 16),
  "m16_rd_exp1": ([["rd", "exp"]], 16),
  "m16_add_rd_add": ([["add", "rd", "add"]], 16),
  "m16_exp_tr": ([["exp", "tr"]], 16),
  "m16_salu2_add2": ([["salu", "salu", "add", "add"]], 16),
  "m16_add2_salu": ([["add", "add", "salu"]], 16),
  "m16_tr_tr_alt": ([["tr", "tr"], []], 16),
  "m16_tr_rd": ([["tr", "rd"], []], 16),
  "real": (realmix, 16),
}
if __name__ == "__main__":
    iters = int(sys.argv[1]) if len(sys.argv) > 1 else 400
    d = f"build/ub1_{iters}"
    os.makedirs(d, exist_ok=True)
    for name, (pat, shape) in tests.items():
        n = 160 if shape == 16 else 80
        body = pat if callable(pat) else mk(pat, shape, n)
        gen(f"{d}/{name}.s", body, iters=iters, pre=pre_addr)
    print(" ".join(f"{d}/{n}.s" for n in tests))
```

```python
import sys, os
sys.path.insert(0, os.path.dirname(os.path.abspath(__file__)))
from asmlib import *
from ub1 import gen, pre_addr

def mk(first, nslow, nfast):
    def pre(a):
        pre_addr(a)
        a("v_lshlrev_b32 v11, 4, v9")
        a("buffer_load_dwordx4 v[64:67], v11, s[16:19], 0 offen\ns_waitcnt vmcnt(0)")
        a("s_lshl_b32 s52, s2, 2\ns_add_u32 s52, s52, s3\ns_lshl_b32 s52, s52, 15\ns_add_u32 s52, s52, 0x1000000")
        a("s_lshl_b32 s53, s3, 13\ns_add_u32 s53, s53, 65536")
    def body(a):
        a("s_memtime s[70:71]\ns_waitcnt lgkmcnt(0)")
        for k in range(nslow):
            if first == "dma":
                a(f"s_add_u32 m0, s53, {k * 1024 - (k % 4) * 1024}\ns_nop 0")
                a(f"buffer_load_dwordx4 v11, s[8:11], s52 offen offset:{(k % 4) * 1024} nt lds")
            else:
                a(f"buffer_load_dwordx4 v[{128 + 4 * k}:{131 + 4 * k}], v11, s[8:11], s52 offen offset:{(k % 4) * 1024} nt")
            if k % 4 == 3: a("s_add_u32 s52, s52, 4096")
        for k in range(nfast):
            if first == "dma":
                a(f"buffer_load_dwordx4 v[{64 + 4 * k}:{67 + 4 * k}], v11, s[16:19], 0 offen")
            else:
                a(f"s_mov_b32 m0, s53\ns_nop 0\nbuffer_load_dwordx4 v11, s[16:19], 0 offen lds")
        a(f"s_waitcnt vmcnt({nslow if nfast else 0})")
        a("s_memtime s[72:73]\ns_waitcnt lgkmcnt(0)")
        a("s_waitcnt vmcnt(0)")
        a("s_memtime s[74:75]\ns_waitcnt lgkmcnt(0)")
        a("s_waitcnt vmcnt(0)")
        a("s_sub_u32 s76, s72, s70\ns_sub_u32 s77, s74, s70")
    return pre, body
tests = {"dma2_then_vg2": mk("dma", 2, 2), "vg2_then_dma2": mk("vg", 2, 2), "dma2_only": mk("dma", 2, 0), "vg2_only": mk("vg", 2, 0),
         "dma0_vg2": mk("dma", 0, 2), "vg0_dma2": mk("vg", 0, 2), "dma1_then_vg1": mk("dma", 1, 1)}
if __name__ == "__main__":
    d = "build/ub10"
    os.makedirs(d, exist_ok=True)
    for name, (pre, body) in tests.items():
        gen(f"{d}/{name}.s", body, iters=1, pre=pre)
        t = open(f"{d}/{name}.s").read()
        t = t.replace("s_sub_u32 s34, s34, s30", "s_mov_b32 s34, s76").replace("s_sub_u32 s36, s36, s32", "s_mov_b32 s36, s77")
        open(f"{d}/{name}.s", "w").write(t)
    print(" ".join(f"{d}/{n}.s" for n in tests))
```
